```python
import torch

def _softmax(x, axis=-1):
    return torch.softmax(x, dim=axis)

def _gelu(x):
    return torch.nn.functional.gelu(x, approximate='tanh')

def _silu(x):
    return torch.nn.functional.silu(x)

def _sigmoid(x):
    return torch.sigmoid(x)

def _layernorm(x, axis=-1, eps=1e-05):
    m = x.mean(dim=axis, keepdim=True)
    v = x.var(dim=axis, keepdim=True, unbiased=False)
    return (x - m) / torch.sqrt(v + eps)

def _scatter_add(tgt, idx, src, axis=0):
    return tgt.clone().index_add_(axis, idx, src)

def _segment_sum(src, seg, n):
    out = torch.zeros((n,) + src.shape[1:], dtype=src.dtype)
    return out.index_add_(0, seg, src)

def _pad(x, pw):
    flat = tuple((v for pair in reversed(pw) for v in pair))
    return torch.nn.functional.pad(x, flat)
kernel_name = 'standalone__tree_speculative_verify_tree_attention_over_candidate_token_tree__decode'

def setup_inputs():

    _w = lambda a: (lambda t: t.to(torch.bfloat16) if t.is_floating_point() else t)(torch.as_tensor(a))
    B, Hq, Hkv, T, C, D = (2, 32, 16, 1, 4096, 128)
    tree_mask = torch.zeros((B, T, T), dtype=float)
    for b in range(B):
        parent = torch.zeros(T, dtype=torch.int64)
        for i in range(1, T):
            parent[i] = int(torch.randint(0, i, (1,)).item())
        for i in range(T):
            j = i
            tree_mask[b, i, j] = 1.0
            while j > 0:
                j = parent[j]
                tree_mask[b, i, j] = 1.0
    return {'q': _w((lambda *s: torch.randn(*s, dtype=torch.bfloat16) * 0.8)(B, Hq, T, D)), 'k_cache': _w((lambda *s: torch.randn(*s, dtype=torch.bfloat16) * 0.8)(B, Hkv, C, D)), 'v_cache': _w((lambda *s: torch.randn(*s, dtype=torch.bfloat16) * 0.05)(B, Hkv, C, D)), 'k_tree': _w((lambda *s: torch.randn(*s, dtype=torch.bfloat16) * 0.8)(B, Hkv, T, D)), 'v_tree': _w((lambda *s: torch.randn(*s, dtype=torch.bfloat16) * 0.05)(B, Hkv, T, D)), 'tree_mask': _w(tree_mask)}

def reference(q, k_cache, v_cache, k_tree, v_tree, tree_mask):
    B, Hq, T, D = q.shape
    Hkv, C = (k_cache.shape[1], k_cache.shape[2])
    rep = Hq // Hkv
    kc = (lambda x, n, axis: torch.repeat_interleave(x, n, dim=axis))(k_cache, rep, axis=1)
    vc = (lambda x, n, axis: torch.repeat_interleave(x, n, dim=axis))(v_cache, rep, axis=1)
    kt = (lambda x, n, axis: torch.repeat_interleave(x, n, dim=axis))(k_tree, rep, axis=1)
    vt = (lambda x, n, axis: torch.repeat_interleave(x, n, dim=axis))(v_tree, rep, axis=1)
    k = torch.concatenate([kc, kt], axis=2)
    v = torch.concatenate([vc, vt], axis=2)
    scale = D ** (-0.5)
    scores = torch.einsum('bhqd,bhkd->bhqk', q, k) * scale
    ctx_mask = torch.ones((B, 1, T, C), dtype=scores.dtype)
    tm = tree_mask[:, None, :, :].clone()
    full_mask = torch.concatenate([ctx_mask, tm], axis=-1)
    scores = scores + (1.0 - full_mask) * -1000000000.0
    p = _softmax(scores, axis=-1)
    return torch.einsum('bhqk,bhkd->bhqd', p, v)
```

```python
import re

TRANS = ('v_exp_f32', 'v_log_f32', 'v_rcp_f32', 'v_rsq_f32', 'v_sqrt_f32', 'v_sin_f32', 'v_cos_f32', 'v_rcp_iflag_f32')

def regs_of(tok):
    tok = tok.strip()
    tok = tok.lstrip('-')
    m = re.match(r'^abs\((.*)\)$', tok)
    if m: tok = m.group(1)
    m = re.match(r'^\|(.*)\|$', tok)
    if m: tok = m.group(1)
    m = re.match(r'^([vas])(\d+)$', tok)
    if m: return {m.group(1) + m.group(2)}
    m = re.match(r'^([vas])\[(\d+):(\d+)\]$', tok)
    if m: return {m.group(1) + str(i) for i in range(int(m.group(2)), int(m.group(3)) + 1)}
    if tok in ('vcc', 'vcc_lo', 'vcc_hi'): return {'vcc'}
    if tok in ('exec', 'exec_lo', 'exec_hi'): return {'exec'}
    if tok == 'm0': return {'m0'}
    return set()

class Ins:
    def __init__(self, text):
        self.text = text
        t = text.split(';')[0].strip()
        self.is_label = t.endswith(':')
        self.is_dir = t.startswith('.') or t == ''
        self.op = ''
        self.reads = set(); self.writes = set(); self.srcc = set(); self.ab = set()
        self.kind = 'other'
        self.states = 0 if (self.is_label or self.is_dir) else 1
        if self.is_label or self.is_dir: return
        parts = t.split(None, 1)
        self.op = parts[0]
        rest = parts[1] if len(parts) > 1 else ''
        ops = []; cur = ''; depth = 0
        for ch in rest:
            if ch == '[': depth += 1
            if ch == ']': depth -= 1
            if ch == ',' and depth == 0:
                ops.append(cur.strip()); cur = ''
            else: cur += ch
        if cur.strip(): ops.append(cur.strip())
        mods = ''
        if ops:
            sp = ops[-1].split(None, 1)
            ops[-1] = sp[0]
            if len(sp) > 1: mods = sp[1]
        self.ops = ops; self.mods = mods
        op = self.op
        R = [regs_of(o) for o in ops]
        allr = set().union(*R) if R else set()
        self.dpp = ('dpp' in op) or ('quad_perm' in mods) or ('row_' in mods)
        self.sdwa = ('sdwa' in op) or ('op_sel' in mods and not op.startswith('v_pk') and not op.startswith('v_mfma'))
        if op == 's_nop':
            self.states = int(ops[0], 0) + 1; self.kind = 'nop'
        elif op.startswith('v_mfma'):
            self.kind = 'mfma'
            self.writes = R[0]; self.ab = R[1] | R[2]; self.srcc = R[3]; self.reads = self.ab | self.srcc
            self.passes = 8 if '32x32' in op else 4
            if '4x4x4' in op: self.passes = 2
        elif op.startswith('v_'):
            self.kind = 'valu'
            if op.startswith('v_cmp'):
                self.writes = set(R[0]); self.reads = set().union(*R[1:])
                if op.startswith('v_cmpx'): self.writes |= {'exec'}
            elif op.startswith('v_permlane') and 'swap' in op:
                self.writes = R[0] | R[1]; self.reads = R[0] | R[1]
            elif op.startswith('v_swap'):
                self.writes = R[0] | R[1]; self.reads = R[0] | R[1]
            elif re.match(r'v_(add|sub|subrev|addc|subb|subbrev)_co', op) or op.startswith('v_div_scale') or op.startswith('v_mad_u64'):
                self.writes = R[0] | R[1]; self.reads = set().union(*R[2:])
            elif op == 'v_nop':
                pass
            else:
                self.writes = set(R[0]); self.reads = set().union(*R[1:]) if len(R) > 1 else set()
                if op.startswith('v_fmac') or op.startswith('v_dot2c') or op.startswith('v_writelane') or op.startswith('v_pk_fmac') or self.dpp or self.sdwa:
                    self.reads |= R[0]
                if op.startswith('v_cndmask') and len(ops) == 3: self.reads |= {'vcc'}
            self.trans = any(op.startswith(x) for x in TRANS)
        elif op.startswith(('global_', 'buffer_', 'flat_')):
            self.kind = 'vmem'
            is_store = 'store' in op
            is_atomic = 'atomic' in op
            lds = ('_lds_' in op) or re.search(r'\blds\b', mods) is not None
            self.lds_dma = lds
            if op in ('buffer_wbl2', 'buffer_inv'):
                pass
            elif is_store or lds:
                self.reads = allr
            elif is_atomic:
                self.reads = allr
                if 'sc0' in mods: self.writes = set(R[0])
            else:
                self.writes = set(R[0]); self.reads = set().union(*R[1:])
            self.wide_store = set()
            if is_store and ('x3' in op or 'x4' in op):
                self.wide_store = R[1] if op.startswith('global_') or op.startswith('flat_') else R[0]
        elif op.startswith('ds_'):
            self.kind = 'ds'
            if op.startswith(('ds_read', 'ds_bpermute', 'ds_permute', 'ds_swizzle')) or '_rtn' in op:
                self.writes = set(R[0]); self.reads = set().union(*R[1:]) if len(R) > 1 else set()
            else:
                self.reads = allr
        elif op.startswith('s_'):
            self.kind = 'salu'
            if op.startswith(('s_cmp', 's_waitcnt', 's_barrier', 's_branch', 's_cbranch', 's_endpgm', 's_setprio', 's_sleep', 's_bitcmp')):
                self.reads = allr
            else:
                self.writes = set(R[0]) if R else set(); self.reads = set().union(*R[1:]) if len(R) > 1 else set()
                if 'saveexec' in op: self.writes |= {'exec'}

def need(prod, cons):
    n = 0
    pk, ck = prod.kind, cons.kind
    vw = {r for r in prod.writes if r[0] in 'va' and r != 'vcc'}
    sw = {r for r in prod.writes if r[0] == 's' or r == 'vcc'}
    if pk == 'valu':
        if ck == 'mfma' and (vw & cons.reads): n = max(n, 2)
        if ck == 'valu':
            if cons.dpp and (vw & cons.reads): n = max(n, 2)
            if cons.op.startswith('v_permlane') and (vw & cons.reads): n = max(n, 2)
            if cons.op.startswith(('v_readlane', 'v_readfirstlane')) and (vw & cons.reads): n = max(n, 1)
            if prod.trans and (vw & cons.reads): n = max(n, 1)
            if sw & cons.reads:
                n = max(n, 4 if cons.op.startswith(('v_readlane', 'v_writelane', 'v_div_fmas')) else 2)
            if prod.sdwa and (vw & (cons.reads | cons.writes)): n = max(n, 1)
            if 'exec' in prod.writes:
                n = max(n, 5 if cons.dpp else 4 if cons.op.startswith(('v_readlane', 'v_readfirstlane', 'v_writelane', 'v_permlane')) else 0)
        if ck == 'mfma' and 'exec' in prod.writes: n = max(n, 4)
        if ck == 'vmem' and (sw & cons.reads): n = max(n, 5)
        if ck == 'salu' and (sw & cons.reads): n = max(n, 1)
        if prod.trans and ck in ('vmem', 'ds') and (vw & cons.reads): n = max(n, 1)
    if pk == 'mfma':
        p = prod.passes
        t_ab = {2: 5, 4: 8, 8: 12, 16: 20}[p]
        t_ov = {2: 4, 4: 6, 8: 10, 16: 18}[p]
        t_war = {2: 1, 4: 3, 8: 7, 16: 15}[p]
        if ck == 'mfma':
            if prod.writes & cons.ab: n = max(n, t_ab)
            if prod.writes & cons.srcc:
                if cons.srcc == prod.writes and cons.passes == p: n = max(n, 2 if p == 2 else 0)
                else: n = max(n, t_ov)
            elif prod.writes & cons.writes: n = max(n, t_ab)
        elif ck in ('valu', 'vmem', 'ds'):
            if prod.writes & (cons.reads | cons.writes): n = max(n, t_ab)
            if ck == 'valu' and (prod.srcc & cons.writes): n = max(n, t_war)
    if pk == 'vmem' and getattr(prod, 'wide_store', None):
        if prod.wide_store & cons.writes: n = max(n, 2)
    if pk == 'salu' and 'm0' in prod.writes:
        if (ck == 'vmem' and getattr(cons, 'lds_dma', False)) or 'addtid' in cons.op: n = max(n, 1)
    return n

class Asm:
    def __init__(self):
        self.lines = []
    def __call__(self, text):
        for l in text.split('\n'):
            l = l.strip()
            if l: self.lines.append(l)
    def finalize(self):
        out = []
        for l in self.lines:
            ins = Ins(l)
            if ins.states:
                req = 0; dist = 0
                for prev in reversed(out):
                    if dist >= 20: break
                    if prev.states == 0: continue
                    r = need(prev, ins) - dist
                    req = max(req, r)
                    dist += prev.states
                while req > 0:
                    k = min(req, 16)
                    out.append(Ins('s_nop %d' % (k - 1)))
                    req -= k
            out.append(ins)
        txt = []
        for i in out:
            txt.append(i.text if (i.is_label or i.text.startswith('.')) else '    ' + i.text)
        return '\n'.join(txt) + '\n'
```

```python
import sys, math, struct
from asmlib import Asm
NAME = 'standalone__tree_speculative_verify_tree_attention_over_candidate_token_tree__decode'
HDR = open('cdna_kernels/%s.s.ref' % NAME).read().split('; Override launch')[0]

def f32(x): return '0x%08x' % struct.unpack('<I', struct.pack('<f', x))[0]

def gen(NW=16, NSPLIT=8, layout='contig', wgmap='sg', ld='', vorder='upfront', lds=None, qpos=2):
    NWG = 32 * NSPLIT
    KPW = 4096 // NSPLIT
    NT = KPW // NW // 4
    LS = int(math.log2(NSPLIT))
    VQ, VM, VO, VD, VT, VKT, VVT, VS = 8, 12, 16, 20, 36, 44, 48, 52
    VK = (VS + NT + 1 + 3) // 4 * 4
    vacc = NT > 16
    VV = 0 if vacc else VK + 4 * NT
    vp = 'a' if vacc else 'v'
    TB = 44
    arch = max(VK + 4 * NT + (0 if vacc else 4 * NT), TB + 4 * NW, TB + 6 * NSPLIT)
    arch = (arch + 3) // 4 * 4
    nacc = 4 * NT if vacc else 0
    MOFF, LOFF, OOFF = 0, 128, 256
    ldsneed = OOFF + NW * 1024
    if lds is None: lds = ldsneed
    assert lds >= ldsneed
    SK, SV, SQ, SKT, SVT, SOUT, SWS, SDBG, SMASK = 24, 28, 32, 36, 40, 44, 48, 52, 54
    STO = 60
    C = (128 ** -0.5) * math.log2(math.e)
    a = Asm()
    def q(r, n=4, p='v'): return '%s[%d:%d]' % (p, r, r + n - 1)
    def sq(r, n=4): return 's[%d:%d]' % (r, r + n - 1)
    a('s_cmp_ge_u32 s2, %d' % NWG)
    a('s_cbranch_scc1 L_end')
    a('s_load_dwordx2 %s, s[0:1], 8' % sq(SK, 2))
    a('s_load_dwordx2 %s, s[0:1], 16' % sq(SV, 2))
    a('s_load_dwordx2 %s, s[0:1], 0' % sq(SQ, 2))
    a('s_load_dwordx2 %s, s[0:1], 24' % sq(SKT, 2))
    a('s_load_dwordx2 %s, s[0:1], 32' % sq(SVT, 2))
    a('s_load_dwordx2 %s, s[0:1], 40' % sq(SMASK, 2))
    a('s_load_dwordx2 %s, s[0:1], 48' % sq(SOUT, 2))
    a('s_load_dwordx2 %s, s[0:1], 56' % sq(SDBG, 2))
    a('s_load_dwordx2 %s, s[0:1], 64' % sq(SWS, 2))
    if wgmap == 'sg':
        a('s_and_b32 s22, s2, 31'); a('s_lshr_b32 s23, s2, 5')
    else:
        a('s_lshr_b32 s22, s2, %d' % LS); a('s_and_b32 s23, s2, %d' % (NSPLIT - 1))
    a('s_lshl_b32 s3, s22, 20')
    a('s_mul_i32 s4, s23, %d' % (KPW * 256))
    a('s_add_u32 s3, s3, s4')
    for s, n in ((SK, 1 << 25), (SV, 1 << 25), (SQ, 16384), (SKT, 8192), (SVT, 8192), (SOUT, 16384), (SWS, NWG * 2048)):
        a('s_mov_b32 s%d, %d' % (s + 2, n)); a('s_mov_b32 s%d, 0x20000' % (s + 3))
    tstride = 1024 if layout == 'contig' else NW * 1024
    wstride = NT * 1024 if layout == 'contig' else 1024
    def toff(t):
        o = t * tstride
        base = o & ~4095; imm = o & 4095
        return base, imm
    bases = sorted({toff(t)[0] for t in range(NT)})
    sreg = {}
    for i, b in enumerate(bases):
        if b == 0: sreg[b] = '0'
        else:
            sreg[b] = 's%d' % (STO + i); a('s_mov_b32 s%d, %d' % (STO + i, b))
    a('v_and_b32 v1, 63, v0')
    a('v_lshrrev_b32 v5, 6, v0')
    a('v_mul_u32_u24 v6, %d, v5' % wstride)
    a('v_add_u32 v6, s3, v6')
    a('v_readfirstlane_b32 s57, v5')
    a('v_lshl_add_u32 v3, v1, 4, v6')
    a('v_and_b32 v7, 48, v1')
    a('v_lshlrev_b32 v7, 2, v7')
    a('v_and_b32 v4, 3, v1')
    a('v_lshl_or_b32 v7, v4, 4, v7')
    a('v_and_b32 v4, 12, v1')
    a('v_lshl_or_b32 v2, v4, 6, v7')
    a('v_add_u32 v2, v2, v6')
    a('v_and_b32 v4, 8, v1')
    a('v_lshl_or_b32 v4, v4, 5, v7')
    a('s_lshl_b32 s5, s22, 9')
    a('s_lshl_b32 s6, s22, 8')
    a('s_or_b32 s7, s23, s57')
    a('s_waitcnt lgkmcnt(0)')
    def ldk(t):
        b, i = toff(t)
        a('buffer_load_dwordx4 %s, v2, %s, %s offen offset:%d %s' % (q(VK + 4 * t), sq(SK), sreg[b], i, ld))
    def ldv(t):
        b, i = toff(t)
        a('buffer_load_dwordx4 %s, v3, %s, %s offen offset:%d %s' % (q(VV + 4 * t, 4, vp), sq(SV), sreg[b], i, ld))
    for t in range(min(qpos, NT)): ldk(t)
    a('buffer_load_dwordx4 %s, v4, %s, s5 offen' % (q(VQ), sq(SQ)))
    a('s_cmp_lg_u32 s7, 0')
    a('s_cbranch_scc1 L_notree0')
    a('s_load_dword s56, %s, 0' % sq(SMASK, 2))
    a('v_and_b32 v%d, 15, v1' % VT)
    a('v_lshlrev_b32 v%d, 4, v%d' % (VT, VT))
    a('buffer_load_dwordx4 %s, v7, %s, s6 offen' % (q(VKT), sq(SKT)))
    a('buffer_load_dwordx4 %s, v%d, %s, s6 offen' % (q(VVT), VT, sq(SVT)))
    a('L_notree0:')
    for t in range(min(qpos, NT), NT): ldk(t)
    nv_up = 0
    if vorder == 'upfront_bar': a('s_barrier')
    if vorder in ('upfront', 'upfront_bar'):
        nv_up = min(NT, 63 - 3 - NT)
    elif vorder == 'half':
        nv_up = NT // 2
    for t in range(nv_up): ldv(t)
    a('v_and_b32 v%d, 1, v1' % VT)
    a('v_lshlrev_b32 v%d, 4, v%d' % (VT, VT))
    a('v_mov_b32 v%d, 0xffff' % (VT + 1))
    a('v_lshlrev_b32 v%d, v%d, v%d' % (VT + 1, VT, VT + 1))
    a('v_bfe_u32 v%d, v1, 1, 2' % VT)
    for i in range(4):
        a('v_cmp_eq_u32 vcc, %d, v%d' % (i, VT))
        a('v_cndmask_b32 v%d, 0, v%d, vcc' % (VM + i, VT + 1))
    for i in range(4): a('v_mov_b32 v%d, 0' % (VO + i))
    a('v_mov_b32 v%d, 0xff800000' % (VS + NT))
    a('v_bfe_u32 v%d, v1, 3, 1' % (VT + 2))
    a('v_mul_u32_u24 v%d, %d, v%d' % (VT + 2, NW * 4, VT + 2))
    a('v_lshl_add_u32 v%d, v5, 2, v%d' % (VT + 3, VT + 2))
    a('s_mov_b32 s8, %s' % f32(C))
    def red(dq, dst):
        a('v_mov_b32_dpp v%d, v%d quad_perm:[0,0,0,0] row_mask:0xf bank_mask:0xf' % (dst, dq))
        for i in range(1, 4):
            a('v_add_f32_dpp v%d, v%d, v%d quad_perm:[%d,%d,%d,%d] row_mask:0xf bank_mask:0xf' % (dst, dq + i, dst, i, i, i, i))
    LAG = 3
    issued_v = nv_up
    for t in range(NT + LAG):
        if t < NT:
            tt = max(t, min(qpos, NT) - 1)
            n = (NT - 1 - tt) + issued_v
            a('s_waitcnt vmcnt(%d)' % n)
            a('v_mfma_f32_16x16x32_bf16 %s, %s, %s, 0' % (q(VD + 4 * (t % 4)), q(VK + 4 * t), q(VQ)))
            if issued_v < NT:
                ldv(issued_v); issued_v += 1
        if t >= LAG: red(VD + 4 * ((t - LAG) % 4), VS + t - LAG)
    assert issued_v == NT
    a('s_cmp_lg_u32 s7, 0')
    a('s_cbranch_scc1 L_notree1')
    a('v_mfma_f32_16x16x32_bf16 %s, %s, %s, 0' % (q(VD), q(VKT), q(VQ)))
    a('s_waitcnt lgkmcnt(0)')
    a('s_lshr_b32 s9, s22, 4')
    a('s_lshl_b32 s9, s9, 4')
    a('s_lshr_b32 s9, s56, s9')
    a('s_lshl_b32 s9, s9, 16')
    a('v_sub_f32 v%d, 1.0, s9' % VT)
    a('v_mul_f32 v%d, %s, v%d' % (VT, f32(-1e9 * math.sqrt(128.0)), VT))
    red(VD, VT + 1)
    a('v_add_f32 v%d, v%d, v%d' % (VT + 1, VT + 1, VT))
    a('v_cmp_gt_u32 vcc, 16, v1')
    a('v_cndmask_b32 v%d, v%d, v%d, vcc' % (VS + NT, VS + NT, VT + 1))
    a('L_notree1:')
    a('s_nop 1')
    m = VT
    a('v_max_f32 v%d, v%d, v%d' % (m, VS, VS + NT))
    t = 1
    while t < NT:
        if t + 1 < NT:
            a('v_max3_f32 v%d, v%d, v%d, v%d' % (m, m, VS + t, VS + t + 1)); t += 2
        else:
            a('v_max_f32 v%d, v%d, v%d' % (m, m, VS + t)); t += 1
    def xlane(op, r, tmp):
        for p in ('16', '32'):
            a('v_mov_b32 v%d, v%d' % (tmp, r))
            a('v_permlane%s_swap_b32 v%d, v%d' % (p, r, tmp))
            a('%s v%d, v%d, v%d' % (op, r, r, tmp))
    xlane('v_max_f32', m, VT + 1)
    a('ds_write_b32 v%d, v%d offset:%d' % (VT + 3, m, MOFF))
    a('s_waitcnt lgkmcnt(0)')
    a('s_barrier')
    for i in range(NW // 4):
        a('ds_read_b128 %s, v%d offset:%d' % (q(VD + 4 * i), VT + 2, MOFF + 16 * i))
    a('s_waitcnt lgkmcnt(0)')
    a('v_max_f32 v%d, v%d, v%d' % (m, VD, VD + 1))
    for i in range(2, NW, 2):
        a('v_max3_f32 v%d, v%d, v%d, v%d' % (m, m, VD + i, VD + i + 1))
    a('v_mul_f32 v%d, s8, v%d' % (m, m))
    l = VT + 4
    a('v_readlane_b32 s10, v%d, 0' % m)
    a('v_readlane_b32 s11, v%d, 8' % m)
    for t in range(NT + 1):
        a('v_fma_f32 v%d, v%d, s8, -v%d' % (VS + t, VS + t, m))
    for t in range(NT + 1):
        a('v_exp_f32 v%d, v%d' % (VS + t, VS + t))
    a('v_add_f32 v%d, v%d, v%d' % (l, VS, VS + NT))
    for t in range(1, NT):
        a('v_add_f32 v%d, v%d, v%d' % (l, l, VS + t))
    for t in range(NT + 1):
        a('v_cvt_pk_bf16_f32 v%d, v%d, v%d' % (VS + t, VS + t, VS + t))
    for t in range(NT):
        for i in range(4):
            a('v_and_b32 v%d, v%d, v%d' % (VK + 4 * t + i, VS + t, VM + i))
    xlane('v_add_f32', l, VT + 1)
    a('ds_write_b32 v%d, v%d offset:%d' % (VT + 3, l, LOFF))
    a('s_cmp_lg_u32 s7, 0')
    a('s_cbranch_scc1 L_notree2')
    for i in range(4):
        a('v_and_b32 v%d, v%d, v%d' % (VKT + i, VS + NT, VM + i))
    a('v_mfma_f32_16x16x32_bf16 %s, %s, %s, %s' % (q(VO), q(VKT), q(VVT), q(VO)))
    a('L_notree2:')
    a('v_lshlrev_b32 v6, 4, v0')
    a('v_lshrrev_b32 v7, 5, v1')
    a('v_mul_u32_u24 v%d, %d, v7' % (VT + 2, NW * 4))
    a('v_mov_b32 v%d, s10' % (VT + 6))
    a('v_mov_b32 v%d, s11' % (VT + 5))
    a('v_cmp_gt_u32 vcc, 32, v1')
    a('v_cndmask_b32 v%d, v%d, v%d, vcc' % (VT + 6, VT + 5, VT + 6))
    a('v_lshlrev_b32 v7, 3, v7')
    a('s_lshl_b32 s12, s22, %d' % (11 + LS))
    a('s_lshl_b32 s13, s23, 11')
    a('s_add_u32 s13, s13, s12')
    for t in range(NT):
        a('s_waitcnt vmcnt(%d)' % (NT - 1 - t))
        a('v_mfma_f32_16x16x32_bf16 %s, %s, %s, %s' % (q(VO), q(VK + 4 * t), q(VV + 4 * t, 4, vp), q(VO)))
    a('ds_write_b128 v6, %s offset:%d' % (q(VO), OOFF))
    a('s_waitcnt lgkmcnt(0)')
    a('s_barrier')
    a('s_cmp_lg_u32 s57, 0')
    a('s_cbranch_scc1 L_end')
    TL = VD
    for i in range(NW // 4):
        a('ds_read_b128 %s, v%d offset:%d' % (q(TL + 4 * i), VT + 2, LOFF + 16 * i))
    for w in range(1, NW):
        a('ds_read_b128 %s, v6 offset:%d' % (q(TB + 4 * w), OOFF + 1024 * w))
    a('s_waitcnt lgkmcnt(%d)' % min(14, NW - 1))
    a('v_add_f32 v%d, v%d, v%d' % (VT + 7, TL, TL + 1))
    for i in range(2, NW): a('v_add_f32 v%d, v%d, v%d' % (VT + 7, VT + 7, TL + i))
    for w in range(1, NW):
        a('s_waitcnt lgkmcnt(%d)' % (NW - 1 - w))
        for i in range(0, 4, 2):
            a('v_pk_add_f32 %s, %s, %s' % (q(VO + i, 2), q(VO + i, 2), q(TB + 4 * w + i, 2)))
    a('buffer_store_dwordx4 %s, v6, %s, s13 offen sc1' % (q(VO), sq(SWS)))
    a('buffer_store_dwordx2 %s, v7, %s, s13 offen offset:1024 sc1' % (q(VT + 6, 2), sq(SWS)))
    a('s_lshl_b32 s14, s22, 2')
    a('v_mov_b32 v2, s14')
    a('v_mov_b32 v3, 1')
    a('s_mov_b64 exec, 1')
    a('s_waitcnt vmcnt(0)')
    a('global_atomic_add v4, v2, v3, %s sc0' % sq(SDBG, 2))
    a('s_waitcnt vmcnt(0)')
    a('v_readfirstlane_b32 s15, v4')
    a('s_mov_b64 exec, -1')
    a('s_cmp_lg_u32 s15, %d' % (NSPLIT - 1))
    a('s_cbranch_scc1 L_end')
    TM = TB + 4 * NSPLIT
    for s in range(NSPLIT):
        if s and s % 2 == 0: a('s_add_u32 s12, s12, 4096')
        a('buffer_load_dwordx2 %s, v7, %s, s12 offen offset:%d sc1' % (q(TM + 2 * s, 2), sq(SWS), 1024 + 2048 * (s % 2)))
        a('buffer_load_dwordx4 %s, v6, %s, s12 offen offset:%d sc1' % (q(TB + 4 * s), sq(SWS), 2048 * (s % 2)))
    a('v_and_b32 v2, 15, v1')
    a('v_lshlrev_b32 v2, 4, v2')
    a('v_lshl_or_b32 v2, v7, 5, v2')
    a('v_bfe_u32 v3, v1, 4, 1')
    a('v_lshl_or_b32 v2, v3, 3, v2')
    a('s_waitcnt vmcnt(1)')
    a('v_max_f32 v%d, v%d, v%d' % (m, TM, TM + 2))
    for s in range(2, NSPLIT, 2):
        a('v_max3_f32 v%d, v%d, v%d, v%d' % (m, m, TM + 2 * s, TM + 2 * s + 2))
    for s in range(NSPLIT): a('v_sub_f32 v%d, v%d, v%d' % (TM + 2 * s, TM + 2 * s, m))
    for s in range(NSPLIT): a('v_exp_f32 v%d, v%d' % (TM + 2 * s, TM + 2 * s))
    a('v_mul_f32 v%d, v%d, v%d' % (l, TM, TM + 1))
    for s in range(1, NSPLIT): a('v_fmac_f32 v%d, v%d, v%d' % (l, TM + 2 * s, TM + 2 * s + 1))
    a('v_rcp_f32 v%d, v%d' % (l, l))
    a('s_waitcnt vmcnt(0)')
    for i in range(4): a('v_mul_f32 v%d, v%d, v%d' % (VO + i, TM, TB + i))
    for s in range(1, NSPLIT):
        for i in range(4): a('v_fmac_f32 v%d, v%d, v%d' % (VO + i, TM + 2 * s, TB + 4 * s + i))
    for i in range(4): a('v_mul_f32 v%d, v%d, v%d' % (VO + i, l, VO + i))
    a('v_cvt_pk_bf16_f32 v%d, v%d, v%d' % (VO, VO, VO + 1))
    a('v_cvt_pk_bf16_f32 v%d, v%d, v%d' % (VO + 1, VO + 2, VO + 3))
    a('buffer_store_dwordx2 %s, v2, %s, s5 offen' % (q(VO, 2), sq(SOUT)))
    a('L_end:')
    a('s_endpgm')
    body = a.finalize()
    txt = HDR + '; @launch grid=(%d,1,1) block=(%d,1,1) lds=%d\n' % (NWG, NW * 64, lds)
    txt += '.amdgcn_target "amdgcn-amd-amdhsa--gfx950"\n.text\n.globl %s_kernel\n.p2align 8\n.type %s_kernel,@function\n%s_kernel:\n' % (NAME, NAME, NAME)
    txt += body
    txt += '''.section .rodata,"a"
.p2align 6
.amdhsa_kernel %s_kernel
  .amdhsa_next_free_vgpr %d
  .amdhsa_next_free_sgpr 96
  .amdhsa_accum_offset %d
  .amdhsa_group_segment_fixed_size 0
  .amdhsa_kernarg_size 72
  .amdhsa_user_sgpr_count 2
  .amdhsa_user_sgpr_kernarg_segment_ptr 1
  .amdhsa_system_sgpr_workgroup_id_x 1
  .amdhsa_float_denorm_mode_32 3
.end_amdhsa_kernel
''' % (NAME, arch + nacc, arch)
    return txt, arch, nacc

if __name__ == '__main__':
    import json
    out = sys.argv[1]
    kw = {}
    for x in sys.argv[2:]:
        k, v = x.split('=', 1)
        try: v = int(v)
        except ValueError: pass
        kw[k] = v
    t, arch, nacc = gen(**kw)
    open(out, 'w').write(t)
    print(out, 'arch', arch, 'acc', nacc)
```
